```python
import torch

def _softmax(x, axis=-1):
    return torch.softmax(x, dim=axis)
def _gelu(x):
    return torch.nn.functional.gelu(x, approximate="tanh")
def _silu(x):
    return torch.nn.functional.silu(x)
def _sigmoid(x):
    return torch.sigmoid(x)
def _layernorm(x, axis=-1, eps=1e-5):
    m = x.mean(dim=axis, keepdim=True)
    v = x.var(dim=axis, keepdim=True, unbiased=False)
    return (x - m) / torch.sqrt(v + eps)
def _scatter_add(tgt, idx, src, axis=0):
    return tgt.clone().index_add_(axis, idx, src)
def _segment_sum(src, seg, n):
    out = torch.zeros((n,) + src.shape[1:], dtype=src.dtype)
    return out.index_add_(0, seg, src)
def _pad(x, pw):
    flat = tuple(v for pair in reversed(pw) for v in pair)
    return torch.nn.functional.pad(x, flat)

kernel_name = 'interleave_layers__linear_kernel_hedgehog__sliding_block__prompt'

def setup_inputs():

    _w = (lambda a: (lambda t: t.to(torch.bfloat16) if t.is_floating_point() else t)(torch.as_tensor(a)))
    def _A_setup():
        B, S, D, H = 1, 2048, 576, 32
        Dh = D // H
        return {
            "x": _w((lambda *s: torch.randn(*s, dtype=torch.bfloat16) * 0.05)(B, S, D)),
            "wqkv": _w((lambda *s: torch.randn(*s, dtype=torch.bfloat16) * 0.2)(D, 3 * D)),
            "w_phi": _w((lambda *s: torch.randn(*s, dtype=torch.bfloat16) * 0.2)(H, Dh, Dh) * (Dh ** -0.5)),
            "wo": _w((lambda *s: torch.randn(*s, dtype=torch.bfloat16) * 0.05)(D, D)),
        }
    _A_in = _A_setup()

    def _B_setup():
        B, S, D = 1, 2048, 576
        return {
            "x": _w((lambda *s: torch.randn(*s, dtype=torch.bfloat16) * 0.05)(B, S, D)),
            "wqkv": _w((lambda *s: torch.randn(*s, dtype=torch.bfloat16) * 0.1)(D, 3 * D)),
            "wo": _w((lambda *s: torch.randn(*s, dtype=torch.bfloat16) * 0.05)(D, D)),
        }
    _B_in = _B_setup()

    return {
        "A_x": _A_in["x"],
        "A_wqkv": _A_in["wqkv"],
        "A_w_phi": _A_in["w_phi"],
        "A_wo": _A_in["wo"],
        "B_x": _B_in["x"],
        "B_wqkv": _B_in["wqkv"],
        "B_wo": _B_in["wo"],
    }

def reference(A_x, A_wqkv, A_w_phi, A_wo, B_x, B_wqkv, B_wo):
    def _A_ref(x, wqkv, w_phi, wo):
        B, S, D = x.shape
        H = 32; Dh = D // H
        qkv = (lambda x, *d: x.permute(*d))((x @ wqkv).reshape(B, S, 3, H, Dh), 2, 0, 3, 1, 4)
        q, k, v = qkv[0], qkv[1], qkv[2]
        pq = torch.einsum("bhsd,hdf->bhsf", q, w_phi)
        pk = torch.einsum("bhsd,hdf->bhsf", k, w_phi)
        phi_q = torch.concatenate([_softmax(pq, axis=-1), _softmax(-pq, axis=-1)], axis=-1)
        phi_k = torch.concatenate([_softmax(pk, axis=-1), _softmax(-pk, axis=-1)], axis=-1)
        kv = torch.einsum("bhsf,bhsd->bhfd", phi_k, v)
        z  = torch.einsum("bhsf->bhf", phi_k)
        num = torch.einsum("bhqf,bhfd->bhqd", phi_q, kv)
        den = torch.einsum("bhqf,bhf->bhq", phi_q, z)[..., None] + 1e-6
        o = num / den
        return (lambda x, *d: x.permute(*d))(o, 0, 2, 1, 3).reshape(B, S, D) @ wo

    def _B_ref(x, wqkv, wo):
        B, S, D = x.shape
        H = 32; Dh = D // H; W = 256
        qkv = (lambda x, *d: x.permute(*d))((x @ wqkv).reshape(B, S, 3, H, Dh), 2, 0, 3, 1, 4)
        q, k, v = qkv[0], qkv[1], qkv[2]
        scores = torch.einsum("bhqd,bhkd->bhqk", q, k) * (Dh ** -0.5)
        idx = torch.arange(S)
        mask = (idx[:, None] - idx[None, :] >= 0) & (idx[:, None] - idx[None, :] < W)
        scores = torch.where(mask[None, None], scores, -1e9)
        p = _softmax(scores, axis=-1)
        o = torch.einsum("bhqk,bhkd->bhqd", p, v)
        return (lambda x, *d: x.permute(*d))(o, 0, 2, 1, 3).reshape(B, S, D) @ wo

    x = A_x
    x = x + _A_ref(_layernorm(x, axis=-1), A_wqkv, A_w_phi, A_wo)
    x = x + _B_ref(_layernorm(x, axis=-1), B_wqkv, B_wo)
    x = x + _A_ref(_layernorm(x, axis=-1), A_wqkv, A_w_phi, A_wo)
    x = x + _B_ref(_layernorm(x, axis=-1), B_wqkv, B_wo)
    return x
```

```python
import re

TRANS = ("v_exp_f32", "v_log_f32", "v_rcp_f32", "v_rsq_f32", "v_sqrt_f32", "v_sin_f32", "v_cos_f32",
         "v_rcp_iflag_f32")


def _regs(tok):
    tok = tok.strip()
    tok = tok.lstrip("-")
    m = re.fullmatch(r"abs\((.*)\)", tok)
    if m:
        tok = m.group(1)
    tok = tok.strip("|")
    m = re.fullmatch(r"([vsa])(\d+)", tok)
    if m:
        return [tok]
    m = re.fullmatch(r"([vsa])\[(\d+):(\d+)\]", tok)
    if m:
        return [f"{m.group(1)}{i}" for i in range(int(m.group(2)), int(m.group(3)) + 1)]
    if tok in ("vcc", "vcc_lo", "vcc_hi"):
        return ["vcc"]
    if tok in ("exec", "exec_lo", "exec_hi"):
        return ["exec"]
    if tok == "m0":
        return ["m0"]
    return []


def split_ops(s):
    out, depth, cur = [], 0, ""
    for ch in s:
        if ch in "[(":
            depth += 1
        if ch in "])":
            depth -= 1
        if ch == "," and depth == 0:
            out.append(cur.strip())
            cur = ""
        else:
            cur += ch
    if cur.strip():
        out.append(cur.strip())
    return out


class Ins:
    __slots__ = ("text", "mn", "ops", "cls", "wr", "rd", "passes", "srcc", "srcab", "wide_store_data", "nopn")

    def __init__(self, text):
        self.text = text
        t = text.split(";")[0].strip()
        parts = t.split(None, 1)
        self.mn = parts[0]
        rest = parts[1] if len(parts) > 1 else ""
        ops = split_ops(rest)
        if ops:
            last = ops[-1].split()
            ops[-1] = last[0] if last else ""
            self_mods = last[1:]
        else:
            self_mods = []
        self.ops = ops
        mn = self.mn
        self.wr, self.rd = [], []
        self.passes = 0
        self.srcc, self.srcab, self.wide_store_data = [], [], []
        self.nopn = 0
        R = _regs
        if mn == "s_nop":
            self.cls = "nop"
            self.nopn = int(ops[0], 0) + 1
        elif mn.startswith("v_mfma"):
            self.cls = "mfma"
            self.wr = R(ops[0])
            self.srcab = R(ops[1]) + R(ops[2])
            self.srcc = R(ops[3])
            self.rd = self.srcab + self.srcc
            self.passes = 8 if "32x32" in mn else 4
        elif mn.startswith("v_cmpx"):
            self.cls = "valu"
            self.wr = R(ops[0]) + ["exec"]
            self.rd = sum((R(o) for o in ops[1:]), [])
        elif mn.startswith("v_cmp"):
            self.cls = "valu"
            self.wr = R(ops[0])
            self.rd = sum((R(o) for o in ops[1:]), [])
        elif mn.startswith("v_permlane") and "swap" in mn:
            self.cls = "permlane"
            self.wr = R(ops[0]) + R(ops[1])
            self.rd = R(ops[0]) + R(ops[1])
        elif mn in ("v_readfirstlane_b32", "v_readlane_b32"):
            self.cls = "readlane"
            self.wr = R(ops[0])
            self.rd = sum((R(o) for o in ops[1:]), [])
        elif mn.startswith("v_"):
            self.cls = "trans" if mn.replace("_e32", "").replace("_e64", "") in TRANS else "valu"
            self.wr = R(ops[0])
            k = 1
            if mn.startswith(("v_add_co", "v_sub_co", "v_addc_co", "v_subb_co", "v_subrev_co", "v_div_scale",
                              "v_mad_u64_u32")):
                self.wr += R(ops[1])
                k = 2
            self.rd = sum((R(o) for o in ops[k:]), [])
            if mn.startswith(("v_fmac", "v_mac", "v_dot2c", "v_pk_fmac", "v_writelane")):
                self.rd += R(ops[0])
            if mn.startswith("v_cndmask") and len(ops) == 3:
                self.rd += ["vcc"]
            if "dpp" in text or "row_" in text or "quad_perm" in text:
                self.cls = "dpp"
                self.rd += R(ops[0])
        elif mn.startswith(("buffer_", "global_")):
            self.cls = "vmem"
            lds = "lds" in self_mods or "_lds_" in mn
            if "load" in mn and not lds:
                self.wr = R(ops[0])
                self.rd = sum((R(o) for o in ops[1:]), [])
                if "d16" in mn:
                    self.rd += R(ops[0])
            elif lds:
                self.rd = sum((R(o) for o in ops), []) + ["m0"]
            else:
                self.rd = sum((R(o) for o in ops), [])
                data = ops[0] if mn.startswith("buffer_") else ops[1]
                if "x4" in mn or "x3" in mn:
                    self.wide_store_data = R(data)
                if "atomic" in mn and ("sc0" in self_mods):
                    self.wr = R(ops[0])
        elif mn.startswith("ds_"):
            self.cls = "ds"
            if "read" in mn or "permute" in mn or "swizzle" in mn or "rtn" in mn:
                self.wr = R(ops[0])
                self.rd = sum((R(o) for o in ops[1:]), [])
            else:
                self.rd = sum((R(o) for o in ops), [])
        elif mn.startswith("s_load") or mn.startswith("s_buffer_load") or mn.startswith("s_mem"):
            self.cls = "smem"
            self.wr = R(ops[0])
            self.rd = sum((R(o) for o in ops[1:]), [])
        elif mn.startswith("s_"):
            self.cls = "salu"
            if mn.startswith(("s_cmp", "s_cbranch", "s_branch", "s_waitcnt", "s_barrier", "s_endpgm", "s_setprio",
                              "s_sleep", "s_bitcmp")):
                self.rd = sum((R(o) for o in ops), [])
            else:
                self.wr = R(ops[0]) if ops else []
                self.rd = sum((R(o) for o in ops[1:]), [])
                if "saveexec" in mn:
                    self.wr += ["exec"]
        else:
            raise ValueError("unknown instruction " + text)


def required_gap(p, c):
    need = 0
    pw, cr, cw = set(p.wr), set(c.rd), set(c.wr)
    valu_like = ("valu", "trans", "dpp", "permlane", "readlane")
    p_valu = p.cls in valu_like
    c_valu = c.cls in valu_like
    if p_valu:
        vw = {r for r in pw if r[0] in "va" and r not in ("vcc",)}
        sw = {r for r in pw if r[0] == "s" or r == "vcc"}
        if c.cls == "mfma" and vw & cr:
            need = max(need, 2)
        if c.cls == "permlane" and vw & cr:
            need = max(need, 2)
        if c.cls == "dpp" and vw & cr:
            need = max(need, 2)
        if c.cls == "readlane" and vw & cr:
            need = max(need, 1)
        if p.cls == "trans" and c_valu and c.cls != "trans" and vw & cr:
            need = max(need, 1)
        if p.cls == "trans" and c.cls in ("vmem", "ds") and vw & cr:
            need = max(need, 1)
        if sw & cr:
            if c.cls == "vmem":
                need = max(need, 5)
            elif c.cls == "readlane":
                need = max(need, 4)
            elif c_valu or c.cls == "mfma":
                need = max(need, 2)
            elif c.cls in ("salu", "smem"):
                need = max(need, 1)
        if "exec" in pw:
            if c.cls in ("dpp",):
                need = max(need, 5)
            if c.cls in ("readlane", "permlane", "mfma"):
                need = max(need, 4)
            if c_valu and "exec" in cr:
                need = max(need, 2)
    if p.mn.startswith("v_dot"):
        if c.mn != p.mn:
            if pw & (cr | cw):
                need = max(need, 3)
        else:
            ab = set(sum((_regs(o) for o in c.ops[1:3]), []))
            if pw & ab:
                need = max(need, 3)
    if p.cls == "salu" and "m0" in pw and c.cls in ("vmem", "ds") and "m0" in cr:
        need = max(need, 1)
    if p.cls == "vmem" and p.wide_store_data:
        if set(p.wide_store_data) & cw:
            need = max(need, 2)
    if p.cls == "mfma":
        n = p.passes
        d = pw
        if c.cls == "mfma":
            if d & set(c.srcab):
                need = max(need, {4: 8, 8: 12}[n])
            if d & set(c.srcc):
                if set(c.srcc) == d and c.passes == n:
                    pass
                else:
                    need = max(need, {4: 6, 8: 10}[n])
            elif d & cw and not (set(c.srcc) == d):
                need = max(need, {4: 6, 8: 10}[n])
        else:
            if d & (cr | cw):
                need = max(need, {4: 8, 8: 12}[n])
            if c_valu and set(p.srcc) & cw:
                need = max(need, {4: 3, 8: 7}[n])
    return need


class Kernel:
    def __init__(self, name):
        self.name = name
        self.out = []
        self.hist = []
        self.pos = 0
        self.vm = []
        self.lg = []
        self.smem_out = False
        self.maxv = -1
        self.maxs = -1
        self.maxa = -1
        self.nlabel = 0

    def c(self, text):
        self.out.append("    ; " + text)

    def label(self, name):
        self.out.append(name + ":")

    def newlabel(self, base="L"):
        self.nlabel += 1
        return f"{self.name}_{base}{self.nlabel}"

    def fence(self, n=12):
        self(f"s_nop {min(n, 16) - 1}")

    def __call__(self, text, tag=None):
        ins = Ins(text)
        need = 0
        for (p, ppos) in self.hist[-24:]:
            g = required_gap(p, ins)
            if g:
                have = self.pos - ppos - 1
                need = max(need, g - have)
        while need > 0:
            n = min(need, 16)
            nop = Ins(f"s_nop {n - 1}")
            self.out.append(nop)
            self.hist.append((nop, self.pos))
            self.pos += n
            need -= n
        self.out.append(ins)
        self.hist.append((ins, self.pos))
        self.pos += ins.nopn if ins.cls == "nop" else 1
        for r in ins.wr + ins.rd:
            if r[0] == "v" and r != "vcc":
                self.maxv = max(self.maxv, int(r[1:]))
            elif r[0] == "s":
                self.maxs = max(self.maxs, int(r[1:]))
            elif r[0] == "a":
                self.maxa = max(self.maxa, int(r[1:]))
        if ins.cls == "vmem":
            self.vm.append(tag)
        elif ins.cls == "ds":
            self.lg.append(tag)
        elif ins.cls == "smem":
            self.smem_out = True
        return ins

    def wait_vm(self, tag=None, also_lg=None):
        if tag is None:
            n = 0
        else:
            idx = [i for i, t in enumerate(self.vm) if t == tag]
            if not idx:
                return
            n = len(self.vm) - 1 - idx[-1]
        if n > 63:
            n = 63
        self(f"s_waitcnt vmcnt({n})")
        self.vm = self.vm[len(self.vm) - n:] if n else []

    def wait_lg(self, tag=None):
        if tag is None or self.smem_out:
            n = 0
            self.smem_out = False
        else:
            idx = [i for i, t in enumerate(self.lg) if t == tag]
            if not idx:
                return
            n = len(self.lg) - 1 - idx[-1]
        if n > 15:
            n = 15
        self(f"s_waitcnt lgkmcnt({n})")
        self.lg = self.lg[len(self.lg) - n:] if n else []

    def wait_all(self):
        self("s_waitcnt vmcnt(0) lgkmcnt(0)")
        self.vm, self.lg, self.smem_out = [], [], False

    def text(self):
        lines = []
        for o in self.out:
            lines.append(o if isinstance(o, str) else "    " + o.text)
        return "\n".join(lines)

    def ninstr(self):
        return sum(1 for o in self.out if not isinstance(o, str))


def vr(a, n=1):
    return f"v{a}" if n == 1 else f"v[{a}:{a + n - 1}]"


def sr(a, n=1):
    return f"s{a}" if n == 1 else f"s[{a}:{a + n - 1}]"


def ar(a, n=1):
    return f"a{a}" if n == 1 else f"a[{a}:{a + n - 1}]"


def wrap_kernel(k, lds_static=0, extra_dir=""):
    nv = k.maxv + 1
    na = k.maxa + 1
    acc_off = max(4, (nv + 3) // 4 * 4)
    nfv = acc_off + na if na else nv
    ns = max(k.maxs + 1, 8)
    body = f""".text
.globl {k.name}
.p2align 8
.type {k.name},@function
{k.name}:
{k.text()}
.section .rodata,"a"
.p2align 6
.amdhsa_kernel {k.name}
  .amdhsa_next_free_vgpr {nfv}
  .amdhsa_next_free_sgpr {ns}
  .amdhsa_accum_offset {acc_off}
  .amdhsa_group_segment_fixed_size 0
  .amdhsa_kernarg_size 80
  .amdhsa_user_sgpr_count 2
  .amdhsa_user_sgpr_kernarg_segment_ptr 1
  .amdhsa_system_sgpr_workgroup_id_x 1
  .amdhsa_float_denorm_mode_32 3
{extra_dir}.end_amdhsa_kernel
"""
    return body
```

```python
from gen_common import *
from gen_qkv import GS, GQ, OOB, f2u

KM, VTO, KLO = 0, 12288, 28672
LDS_ATT = 32768
SB, CI, OA = 64, 208, 224
NEG = f2u(-1e30)


def gen_att():
    k = Kernel("att_body")
    end = k.name + "_end"
    load_args(k)
    k("s_cmp_ge_u32 s2, 512")
    k(f"s_cbranch_scc1 {end}")
    k("v_and_b32 v1, 63, v0")
    k("v_lshrrev_b32 v5, 6, v0")
    k("v_lshrrev_b32 v2, 5, v1")
    k("v_readfirstlane_b32 s40, v5")
    k("v_and_b32 v3, 31, v1")
    k("v_lshlrev_b32 v4, 4, v1")
    k("s_and_b32 s44, s2, 7")
    k("s_lshr_b32 s45, s2, 3")
    k("s_lshr_b32 s41, s44, 1")
    k("s_lshl_b32 s41, s41, 2")
    k("s_lshr_b32 s46, s45, 4")
    k("s_add_u32 s41, s41, s46")
    k("s_and_b32 s42, s44, 1")
    k("s_lshl_b32 s42, s42, 4")
    k("s_and_b32 s46, s45, 15")
    k("s_add_u32 s42, s42, s46")
    k("s_lshr_b32 s47, s3, 1")
    k(f"s_mul_i32 s47, s47, {GQ}")
    k("s_lshl_b32 s48, s42, 16")
    k("s_add_u32 s48, s48, s47")
    k("s_lshl_b32 s49, s42, 13")
    k("s_add_u32 s49, s49, s47")
    k(f"s_mul_i32 s50, s42, {L.VT_HEAD_BYTES}")
    k("s_add_u32 s50, s50, s47")
    k.wait_lg()
    srd(k, 24, P_WS, 65536, L.OFF["KF0"], soff=48)
    srd(k, 28, P_WS, L.VT_HEAD_BYTES, L.OFF["VT0"], soff=50)
    srd(k, 32, P_WS, 8192, L.OFF["KL0"], soff=49)
    srd(k, 36, P_WS, 65536, L.OFF["QF0"], soff=48)
    srd(k, 52, P_WS, 8192, L.OFF["QL0"], soff=49)
    k("s_lshl_b32 s51, s41, 2")
    k("s_add_u32 s51, s51, s40")
    k("s_lshl_b32 s56, s51, 10")
    k("buffer_load_dwordx4 v[8:11], v4, s[36:39], s56 offen", tag="q")
    k("s_lshl_b32 s56, s51, 7")
    k("v_lshlrev_b32 v6, 2, v3")
    k("v_lshl_add_u32 v7, v2, 16, v6")
    k("buffer_load_dword v12, v7, s[52:55], s56 offen", tag="q")
    k("s_lshl_b32 s56, s41, 12")
    k("s_sub_u32 s56, s56, 8192")
    k("s_mul_i32 s57, s40, 3072")
    k("s_add_u32 s56, s56, s57")
    k(f"s_add_u32 s57, s57, {KM}")
    for p in range(3):
        k("v_add_u32 v16, s56, v4")
        k("s_mov_b32 m0, s57")
        k("buffer_load_dwordx4 v16, s[24:27], 0 offen lds", tag="kv")
        k("s_add_u32 s56, s56, 1024")
        k("s_add_u32 s57, s57, 1024")
    k("s_lshl_b32 s56, s41, 9")
    k("s_sub_u32 s56, s56, 1024")
    k("s_lshl_b32 s57, s40, 10")
    k("s_add_u32 s56, s56, s57")
    k(f"s_add_u32 s57, s57, {KLO}")
    k("v_add_u32 v16, s56, v4")
    k("s_mov_b32 m0, s57")
    k("buffer_load_dwordx4 v16, s[32:35], 0 offen lds", tag="k")
    k("s_mul_i32 s56, s41, 5120")
    k("s_sub_u32 s56, s56, 10240")
    k("s_lshl_b32 s57, s40, 12")
    k("s_add_u32 s56, s56, s57")
    k(f"s_add_u32 s57, s57, {VTO}")
    for p in range(4):
        k("v_add_u32 v16, s56, v4")
        k("s_mov_b32 m0, s57")
        k("buffer_load_dwordx4 v16, s[28:31], 0 offen lds", tag="v")
        k("s_add_u32 s56, s56, 1024")
        k("s_add_u32 s57, s57, 1024")
    for z in (13, 14, 15):
        k(f"v_mov_b32 v{z}, 0")
    KF = [16, 24, 32]
    for b in KF:
        for z in range(5, 8):
            k(f"v_mov_b32 v{b + z}, 0")
    k("s_lshl_b32 s56, s40, 10")
    k("v_add_u32 v48, s56, v4")
    k("s_lshl_b32 s56, s40, 7")
    k(f"s_add_u32 s56, s56, {KLO}")
    k("v_add_u32 v49, s56, v6")
    k("v_min_u32 v50, 19, v3")
    k("v_lshlrev_b32 v50, 4, v50")
    k("v_mul_u32_u24 v51, 320, v2")
    k("s_mul_i32 s56, s40, 1280")
    k(f"s_add_u32 s56, s56, {VTO}")
    k("v_add3_u32 v50, v50, v51, s56")
    k("v_lshlrev_b32 v51, 2, v2")
    k("v_sub_u32 v51, v3, v51")
    for i in range(4):
        for r in range(4):
            n = 4 * i + r
            k(f"v_cmp_le_i32 s[{64 + 2 * n}:{65 + 2 * n}], {8 * i + r}, v51")
    k("v_mov_b32 v52, 0xffff")
    k("v_mov_b32 v53, 0xffff0000")
    for x in range(8):
        k(f"v_cndmask_b32 v{40 + x}, 0, v52, s[{64 + 4 * x}:{65 + 4 * x}]")
        k(f"v_cndmask_b32 v54, 0, v53, s[{66 + 4 * x}:{67 + 4 * x}]")
        k(f"v_or_b32 v{40 + x}, v{40 + x}, v54")
    k("s_sub_i32 s58, 8, s51")
    k("s_cmp_gt_i32 s58, 0")
    k(f"s_cselect_b32 s59, {NEG:#x}, 0")
    for i in range(16):
        k(f"v_mov_b32 v{CI + i}, s59")
    k(f"s_mul_i32 s56, s3, {GS}")
    k("s_mul_i32 s57, s51, 36864")
    k("s_add_u32 s56, s56, s57")
    srd(k, 60, P_WS, 36864, L.OFF["OF0"], soff=56)
    k("v_lshrrev_b32 v55, 4, v3")
    k("v_mul_u32_u24 v55, 18432, v55")
    k("v_and_b32 v56, 15, v3")
    k("v_lshl_add_u32 v55, v56, 4, v55")
    k("s_lshr_b32 s56, s42, 1")
    k("s_lshl_b32 s56, s56, 10")
    k("s_and_b32 s57, s42, 1")
    k("s_lshl_b32 s57, s57, 9")
    k("s_add_u32 s56, s56, s57")
    k("v_lshl_add_u32 v56, v2, 8, v55")
    k("v_add_u32 v56, s56, v56")
    k("s_lshr_b32 s56, s42, 4")
    k("s_add_u32 s56, s56, 16")
    k("s_lshl_b32 s56, s56, 10")
    k("s_bfe_u32 s57, s42, 0x20002")
    k("s_lshl_b32 s57, s57, 8")
    k("s_add_u32 s56, s56, s57")
    k("s_and_b32 s57, s42, 3")
    k("s_lshl_b32 s57, s57, 2")
    k("s_add_u32 s56, s56, s57")
    k("v_add_u32 v55, s56, v55")
    k("v_lshl_add_u32 v55, v2, 16, v55")
    k.wait_vm("k")
    k("s_barrier")

    def S(j, n=0, cnt=16):
        return f"v[{SB + 16 * j + n}:{SB + 16 * j + n + cnt - 1}]"

    order = list(range(9))

    def kread(j):
        b = KF[j % 3]
        k(f"ds_read_b128 v[{b}:{b + 3}], v48 offset:{1024 * j}", tag=("k", j))
        k(f"ds_read_b32 v{b + 4}, v49 offset:{128 * j}", tag=("k", j))

    MX = 57
    ool = []
    kread(0)
    kread(1)

    def maxblock(j, first):
        b = SB + 16 * j
        st = 0
        if first:
            k(f"v_max3_f32 v{MX}, v{b}, v{b + 1}, v{b + 2}")
            k(f"v_max_f32 v{MX}, v{MX}, v{b + 3}")
            st = 4
        for n in range(st, 16, 2):
            k(f"v_max3_f32 v{MX}, v{MX}, v{b + n}, v{b + n + 1}")

    for j in order:
        if j + 2 < 9:
            kread(j + 2)
        if j >= 1:
            lab = k.newlabel("cz")
            k(f"s_cmp_eq_u32 s58, {j}")
            k(f"s_cbranch_scc1 {lab}")
            k.label(lab + "_back")
            ool.append(lab)
        k.wait_lg(("k", j))
        b = KF[j % 3]
        k(f"v_mfma_f32_32x32x16_bf16 {S(j)}, v[{b}:{b + 3}], v[8:11], v[{CI}:{CI + 15}]")
        k(f"v_mfma_f32_32x32x16_bf16 {S(j)}, v[{b + 4}:{b + 7}], v[12:15], {S(j)}")
        if j >= 2:
            maxblock(j - 1, j == 2)
    k.wait_vm("v")
    k("s_barrier")
    VF = [240, 244, 248, 252]

    pv_order = [1, 2, 3, 4, 5, 6, 7, 8, 0]

    def vread(j, a):
        b = VF[(2 * pv_order.index(j) + a) % 4]
        k(f"ds_read_b128 v[{b}:{b + 3}], v50 offset:{640 * (2 * j + a)}", tag=("v", j, a))

    vread(1, 0)
    vread(1, 1)
    for n in range(16):
        k(f"v_cndmask_b32 v{SB + 128 + n}, v{SB + n}, v{SB + 128 + n}, s[{64 + 2 * n}:{65 + 2 * n}]")
    maxblock(8, False)
    xreduce(k, "v_max_f32", MX, 58, steps=(32,))
    first = [True]

    def pv(j, a):
        b = VF[(2 * pv_order.index(j) + a) % 4]
        k.wait_lg(("v", j, a))
        cin = "0" if first[0] else f"v[{OA}:{OA + 15}]"
        first[0] = False
        k(f"v_mfma_f32_32x32x16_bf16 v[{OA}:{OA + 15}], v[{b}:{b + 3}], {S(j, 4 * a, 4)}, {cin}")

    pending = []
    for idx, j in enumerate([1, 2, 3, 4, 5, 6, 7, 8]):
        b = SB + 16 * j
        for a in range(2):
            for n in range(8):
                k(f"v_sub_f32 v{b + 8 * a + n}, v{b + 8 * a + n}, v{MX}")
            for n in range(8):
                k(f"v_exp_f32 v{b + 8 * a + n}, v{b + 8 * a + n}")
            if pending:
                jj, aa = pending.pop(0)
                pv(jj, aa)
                nj = pv_order[pv_order.index(jj) + 2] if pv_order.index(jj) + 2 < 9 else None
                if nj is not None:
                    vread(nj, aa)
            for x in range(4):
                k(f"v_cvt_pk_bf16_f32 v{b + 4 * a + x}, v{b + 8 * a + 2 * x}, v{b + 8 * a + 2 * x + 1}")
        if idx == 0:
            vread(2, 0)
            vread(2, 1)
        if j == 8:
            for x in range(8):
                k(f"v_bfi_b32 v{SB + x}, v{40 + x}, 0, v{b + x}")
            for x in range(8):
                k(f"v_and_b32 v{b + x}, v{40 + x}, v{b + x}")
        pending += [(j, 0), (j, 1)]
    pending += [(0, 0), (0, 1)]
    while pending:
        jj, aa = pending.pop(0)
        pv(jj, aa)
        nj = pv_order[pv_order.index(jj) + 2] if pv_order.index(jj) + 2 < 9 else None
        if nj is not None:
            vread(nj, aa)
    k(f"v_rcp_f32 v58, v{OA + 12}")
    for n in range(10):
        k(f"v_mul_f32 v{OA + n}, v58, v{OA + n}")
    for x in range(5):
        k(f"v_cvt_pk_bf16_f32 v{16 + x}, v{OA + 2 * x}, v{OA + 2 * x + 1}")
    k("buffer_store_dwordx4 v[16:19], v56, s[60:63], 0 offen")
    k("buffer_store_dword v20, v55, s[60:63], 0 offen")
    k.label(end)
    k("s_endpgm")
    for lab in ool:
        k.label(lab)
        k("s_nop 7")
        for i in range(16):
            k(f"v_mov_b32 v{CI + i}, 0")
        k("s_nop 1")
        k(f"s_branch {lab}_back")
    return k
```

```python
from asmdsl import *
import layout as L

P_AX, P_AW, P_PHI, P_AWO, P_BX, P_BW, P_BWO, P_OUT, P_DBG, P_WS = 4, 6, 8, 10, 12, 14, 16, 18, 20, 22


def load_args(k):
    k("s_load_dwordx16 s[4:19], s[0:1], 0")
    k("s_load_dwordx4 s[20:23], s[0:1], 64")


def srd(k, d, p, nbytes, off=0, soff=None):
    if off or soff is not None:
        if off:
            k(f"s_add_u32 s{d}, s{p}, {off}")
            k(f"s_addc_u32 s{d + 1}, s{p + 1}, 0")
            if soff is not None:
                k(f"s_add_u32 s{d}, s{d}, s{soff}")
                k(f"s_addc_u32 s{d + 1}, s{d + 1}, 0")
        else:
            k(f"s_add_u32 s{d}, s{p}, s{soff}")
            k(f"s_addc_u32 s{d + 1}, s{p + 1}, 0")
    else:
        k(f"s_mov_b32 s{d}, s{p}")
        k(f"s_mov_b32 s{d + 1}, s{p + 1}")
    k(f"s_mov_b32 s{d + 2}, {nbytes}")
    k(f"s_mov_b32 s{d + 3}, 0x00020000")


def xreduce(k, op, v, tmp, steps=(16, 32)):
    for st in steps:
        k(f"v_mov_b32 v{tmp}, v{v}")
        k(f"v_permlane{st}_swap_b32 v{v}, v{tmp}")
        k(f"{op} v{v}, v{v}, v{tmp}")


def xreduce_multi(k, items, steps=(16, 32)):
    for st in steps:
        for (op, v, tmp) in items:
            k(f"v_mov_b32 v{tmp}, v{v}")
        for (op, v, tmp) in items:
            k(f"v_permlane{st}_swap_b32 v{v}, v{tmp}")
        for (op, v, tmp) in items:
            k(f"{op} v{v}, v{v}, v{tmp}")


def round_bf16(k, v, tmp=None):
    k(f"v_cvt_pk_bf16_f32 v{v}, v{v}, v{v}")
    k(f"v_lshlrev_b32 v{v}, 16, v{v}")


def csel(k, d, a, b):
    k(f"s_mov_b32 s{d}, {b}")
    k(f"s_cselect_b32 s{d}, {a}, s{d}")
```

```python
from gen_common import *
from gen_qkv import tile_map, GS, OOB, XR, WBUF, ACC, gemm_pass

LDS_OUT = 56 * 1024


def gen_out():
    k = Kernel("out_body")
    end = k.name + "_end"
    load_args(k)
    k("s_cmp_ge_u32 s2, 256")
    k(f"s_cbranch_scc1 {end}")
    tile_map(k)
    k(f"s_mul_i32 s47, s3, {GS}")
    k("s_mul_i32 s48, s43, 18432")
    k("s_add_u32 s48, s48, s47")
    k(f"s_mul_i32 s49, s42, {L.WO_CG_BYTES}")
    k("s_and_b32 s50, s3, 1")
    k(f"s_mul_i32 s50, s50, {L.OFF['WOB'] - L.OFF['WOA']}")
    k("s_add_u32 s49, s49, s50")
    k("s_lshl_b32 s51, s43, 11")
    k("s_add_u32 s51, s51, s47")
    k("v_mov_b32 v6, v4")
    k("s_mul_i32 s52, s42, 9")
    k("v_add_u32 v8, s52, v2")
    for t in range(3):
        u = 9 + t
        k(f"v_add_u32 v{u}, {4 * t}, v8")
    for t in range(3):
        u, o = 9 + t, 12 + t
        k(f"v_lshrrev_b32 v{o}, 3, v{u}")
        k(f"v_lshlrev_b32 v{o}, 10, v{o}")
        k(f"v_bfe_u32 v20, v{u}, 1, 2")
        k(f"v_lshl_add_u32 v{o}, v20, 8, v{o}")
        k(f"v_and_b32 v20, 1, v{u}")
        k(f"v_lshl_add_u32 v{o}, v20, 3, v{o}")
        k(f"v_lshl_add_u32 v{o}, v3, 4, v{o}")
        k(f"v_mul_u32_u24 v20, 1152, v3")
        k(f"v_lshl_add_u32 v{u}, v{u}, 3, v20")
    k(f"v_mov_b32 v20, {OOB:#x}")
    k("v_cmp_eq_u32 vcc, 0, v2")
    k("v_cndmask_b32 v14, v20, v14, vcc")
    k("v_cndmask_b32 v11, v20, v11, vcc")
    k.wait_lg()
    srd(k, 24, P_WS, 18432, L.OFF["OF0"], soff=48)
    srd(k, 28, P_WS, L.WO_CG_BYTES, L.OFF["WOA"], soff=49)
    srd(k, 32, P_WS, 18432, L.OFF["XF0"], soff=48)
    RES = 24
    for t in range(3):
        k(f"buffer_load_dwordx2 v[{RES + 2 * t}:{RES + 2 * t + 1}], v{12 + t}, s[32:35], 0 offen", tag="res")
    k("s_lshl_b32 s54, s40, 10")
    xi = 0
    for r in range(7):
        k("s_mov_b32 m0, s54")
        k("buffer_load_dwordx4 v4, s[28:31], s54 offen lds", tag=("W", r))
        if r < 6:
            k("s_add_u32 s54, s54, 8192")
        upto = min(18, (8 * (r + 1)) // 3 + 1)
        while xi < upto:
            so = "0" if xi < 4 else f"s{56 + xi // 4}"
            if xi % 4 == 0 and xi >= 4:
                k(f"s_movk_i32 s{56 + xi // 4}, {4096 * (xi // 4)}")
            k(f"buffer_load_dwordx4 v[{XR + 4 * xi}:{XR + 4 * xi + 3}], v4, s[24:27], {so} offen offset:{1024 * (xi % 4)}",
              tag=("x", xi))
            xi += 1
    assert xi == 18
    for i in range(12):
        k(f"v_mov_b32 v{ACC + i}, 0")
    k(f"s_add_u32 s55, s48, {GS}")
    srd(k, 36, P_WS, 18432, L.OFF["XF0"], soff=55)
    k(f"s_add_u32 s55, s51, {GS}")
    srd(k, 64, P_WS, 2048, L.OFF["ST0"], soff=55)
    k("s_mul_i32 s55, s43, 18432")
    srd(k, 68, P_OUT, 18432, 0, soff=55)
    k("v_lshlrev_b32 v15, 7, v3")
    k("s_lshl_b32 s55, s42, 3")
    k("v_add_u32 v15, s55, v15")
    k("v_cndmask_b32 v15, v20, v15, vcc")
    mf = [(t, t, False) for t in range(3)]
    gemm_pass(k, [0, 1, 2], lambda ks, t: ks * 3 + t, [0, 1, 3, 6], mf, -1)
    k.wait_vm("res")
    T = 32
    for t in range(3):
        a = ACC + 4 * t
        k(f"v_cvt_pk_bf16_f32 v{T}, v{a}, v{a + 1}")
        k(f"v_cvt_pk_bf16_f32 v{T + 1}, v{a + 2}, v{a + 3}")
        for h in range(2):
            k(f"v_lshlrev_b32 v{a + 2 * h}, 16, v{T + h}")
            k(f"v_and_b32 v{a + 2 * h + 1}, 0xffff0000, v{T + h}")
            k(f"v_lshlrev_b32 v{T + 2}, 16, v{RES + 2 * t + h}")
            k(f"v_and_b32 v{T + 3}, 0xffff0000, v{RES + 2 * t + h}")
            k(f"v_add_f32 v{a + 2 * h}, v{a + 2 * h}, v{T + 2}")
            k(f"v_add_f32 v{a + 2 * h + 1}, v{a + 2 * h + 1}, v{T + 3}")
        k(f"v_cvt_pk_bf16_f32 v{40 + 2 * t}, v{a}, v{a + 1}")
        k(f"v_cvt_pk_bf16_f32 v{41 + 2 * t}, v{a + 2}, v{a + 3}")
    fin = k.newlabel("fin")
    k("s_cmp_eq_u32 s3, 3")
    k(f"s_cbranch_scc1 {fin}")
    for t in range(3):
        k(f"buffer_store_dwordx2 v[{40 + 2 * t}:{41 + 2 * t}], v{12 + t}, s[36:39], 0 offen")
    k("v_cndmask_b32 v44, 0, v44, vcc")
    k("v_cndmask_b32 v45, 0, v45, vcc")
    k("v_mov_b32 v46, 0x3f803f80")
    k("v_mov_b32 v48, 0")
    k("v_mov_b32 v49, 0")
    for i in range(6):
        k(f"v_dot2c_f32_bf16 v48, v{40 + i}, v46")
        k(f"v_dot2c_f32_bf16 v49, v{40 + i}, v{40 + i}")
    xreduce_multi(k, [("v_add_f32", 48, 50), ("v_add_f32", 49, 51)])
    k("buffer_store_dwordx2 v[48:49], v15, s[64:67], 0 offen")
    k("s_endpgm")
    k.label(fin)
    k.fence(4)
    for t in range(3):
        k(f"buffer_store_dwordx2 v[{40 + 2 * t}:{41 + 2 * t}], v{9 + t}, s[68:71], 0 offen")
    k.label(end)
    k("s_endpgm")
    return k
```

```python
from gen_common import *

N_WA, N_WB, N_WO, N_X, N_Z = 144, 144, 288, 128, 96
T_WA, T_WB, T_WO, T_X, T_Z = 0, 144, 288, 576, 704
N_TASKS = 800
ONES = 0x3F803F80


def gather8(k, tmp, voff, srd_, soffs, imm):
    for j in range(8):
        so = soffs[j]
        k(f"buffer_load_ushort v{tmp + j}, v{voff}, s[{srd_}:{srd_ + 3}], {so} offen offset:{imm}")


def combine8(k, dst, tmp):
    for i in range(4):
        k(f"v_lshl_or_b32 v{dst + i}, v{tmp + 2 * i + 1}, 16, v{tmp + 2 * i}")


def gen_p():
    k = Kernel("prep_kernel")
    load_args(k)
    k("v_and_b32 v1, 15, v0")
    k("v_lshrrev_b32 v2, 4, v0")
    k("v_lshlrev_b32 v3, 4, v0")
    k(f"s_cmp_ge_u32 s2, {N_TASKS}")
    k("s_cbranch_scc1 prep_end")
    k.wait_lg()
    k(f"s_cmp_ge_u32 s2, {T_Z}")
    k("s_cbranch_scc1 prep_z")
    k(f"s_cmp_ge_u32 s2, {T_X}")
    k("s_cbranch_scc1 prep_x")
    k(f"s_cmp_ge_u32 s2, {T_WO}")
    k("s_cbranch_scc1 prep_wo")
    k(f"s_cmp_ge_u32 s2, {T_WB}")
    k("s_cselect_b32 s3, 144, 0")
    k("s_sub_u32 s3, s2, s3")
    k("s_mul_i32 s40, s3, 7282")
    k("s_lshr_b32 s40, s40, 16")
    k("s_mul_i32 s41, s40, 9")
    k("s_sub_u32 s41, s3, s41")
    for j in range(1, 8):
        k(f"s_mov_b32 s{48 + j}, {j * 3456}")
    soffs = ["0"] + [f"s{48 + j}" for j in range(1, 8)]
    k("s_mul_i32 s42, s41, 221184")
    k("s_mul_i32 s43, s40, 72")
    k("s_add_u32 s42, s42, s43")
    k("v_mul_u32_u24 v4, 27648, v2")
    k("v_add_u32 v4, s42, v4")
    k("s_lshl_b32 s44, s40, 17")
    k("v_add_u32 v5, s44, v3")
    k("s_mul_i32 s45, s3, 512")
    k("v_lshlrev_b32 v6, 2, v1")
    k("v_add_u32 v6, s45, v6")
    k(f"v_mov_b32 v7, {ONES}")
    for t in range(7):
        k(f"v_mov_b32 v{8 + t}, 0")
    k(f"s_cmp_ge_u32 s2, {T_WB}")
    k("s_cbranch_scc1 prep_wb")

    srd(k, 24, P_AW, 576 * 3456)
    srd(k, 28, P_WS, L.W_BYTES, L.OFF["WA"])
    srd(k, 32, P_WS, L.CSP_BYTES, L.OFF["CSPA"])
    srd(k, 36, P_PHI, 32 * 648)
    k("v_lshrrev_b32 v16, 3, v1")
    k("v_bfe_u32 v17, v1, 2, 1")
    k("v_and_b32 v18, 3, v1")
    k("v_mul_u32_u24 v19, 9, v17")
    k("v_add_u32 v19, v19, v18")
    k("s_mul_i32 s46, s40, 1296")
    k("v_mul_u32_u24 v20, 648, v16")
    k("v_add_u32 v20, s46, v20")
    k("v_lshl_add_u32 v20, v19, 1, v20")
    k("v_and_b32 v21, 1, v2")
    k("v_mul_u32_u24 v22, 288, v21")
    k("v_add_u32 v22, v20, v22")
    k("v_lshrrev_b32 v23, 1, v2")
    k("v_mov_b32 v24, 0x7fff0000")
    k("v_cmp_eq_u32 vcc, v23, v16")
    k("v_cndmask_b32 v22, v24, v22, vcc")
    k("v_add_u32 v20, 576, v20")
    k("v_cmp_eq_u32 vcc, v2, v16")
    k("v_cndmask_b32 v20, v24, v20, vcc")
    k("v_subrev_u32 v29, 4, v22")
    k("v_subrev_u32 v30, 4, v20")
    fold = [(0, 0), (1, 0), (2, 0), (4, 18), (5, 18), (6, 18)]
    TMP = 128
    for i, (t, q0) in enumerate(fold):
        imm = 2 * (4 * t - q0)
        vm, vl = 22, 20
        if imm < 0:
            imm, vm, vl = imm + 4, 29, 30
        for j in range(8):
            k(f"buffer_load_ushort v{TMP + 10 * i + j}, v{vm}, s[36:39], 0 offen offset:{imm + 36 * j}")
        for j in range(2):
            k(f"buffer_load_ushort v{TMP + 10 * i + 8 + j}, v{vl}, s[36:39], 0 offen offset:{imm + 36 * j}")
    k("v_lshrrev_b32 v25, 2, v1")
    k("v_lshl_add_u32 v25, v25, 3, v18")
    k("v_mul_u32_u24 v25, 3456, v25")
    k("v_add_u32 v25, s42, v25")
    k("v_mul_u32_u24 v26, 36, v23")
    k("v_lshl_add_u32 v26, v21, 4, v26")
    k("v_add_u32 v26, v25, v26")
    k("v_mul_u32_u24 v27, 36, v2")
    k("v_add_u32 v27, v25, v27")
    k("v_add_u32 v27, 32, v27")
    k("v_mul_u32_u24 v28, 18, v16")
    k("v_add_u32 v28, v28, v19")
    k("v_lshl_add_u32 v28, v28, 1, v4")
    k("s_mov_b32 s47, 13824")
    k("s_mov_b32 s56, 110592")
    k("s_mov_b32 s57, 124416")
    asoff = {(0, 0): "0", (0, 1): "s47", (1, 0): "s56", (1, 1): "s57"}
    k.wait_vm()
    for i in range(6):
        combine8(k, 32 + 8 * i, TMP + 10 * i)
        k(f"v_lshl_or_b32 v{36 + 8 * i}, v{TMP + 10 * i + 9}, 16, v{TMP + 10 * i + 8}")
        for z in range(1, 4):
            k(f"v_mov_b32 v{36 + 8 * i + z}, 0")
    AB = 192
    for ksl in range(2):
        for a in range(2):
            for part in range(2):
                idx = (ksl * 2 + a) * 2 + part
                imm = 1152 if part == 0 else 0
                k(f"buffer_load_dwordx4 v[{AB + 8 * idx}:{AB + 8 * idx + 3}], v26, s[24:27], {asoff[(ksl, a)]} offen offset:{imm}")
                k(f"buffer_load_dword v{AB + 8 * idx + 4}, v27, s[24:27], {asoff[(ksl, a)]} offen offset:{imm}")
                for z in range(5, 8):
                    k(f"v_mov_b32 v{AB + 8 * idx + z}, 0")
    for ksl in range(2):
        if ksl == 1:
            k("v_add_u32 v28, s56, v28")
        for i, t in enumerate((2, 3, 4)):
            gather8(k, TMP + (ksl * 3 + i) * 8, 28, 24, soffs, 2304 + 2 * (4 * t - 9))
    k("v_cmp_eq_u32 s[58:59], 0, v18")
    k("v_cmp_lt_u32 s[60:61], 1, v18")
    k.wait_vm()
    ACC = 80
    FR = 96
    VF = 100
    for ksl in range(2):
        for t in range(7):
            fi = {0: 0, 1: 1, 2: 2, 4: 3, 5: 4, 6: 5}.get(t)
            acc = ACC + 8 * (t & 1)
            fr = FR + 8 * (t & 1)
            if fi is not None:
                part = 0 if t < 3 else 1
                for a in range(2):
                    idx = (ksl * 2 + a) * 2 + part
                    k(f"v_mfma_f32_16x16x32_bf16 v[{acc + 4 * a}:{acc + 4 * a + 3}], v[{AB + 8 * idx}:{AB + 8 * idx + 3}], v[{32 + 8 * fi}:{32 + 8 * fi + 3}], 0")
                for a in range(2):
                    idx = (ksl * 2 + a) * 2 + part
                    k(f"v_mfma_f32_16x16x32_bf16 v[{acc + 4 * a}:{acc + 4 * a + 3}], v[{AB + 8 * idx + 4}:{AB + 8 * idx + 7}], v[{36 + 8 * fi}:{36 + 8 * fi + 3}], v[{acc + 4 * a}:{acc + 4 * a + 3}]")
            if t in (2, 3, 4):
                dst = fr if t == 3 else fr + 4
                combine8(k, dst, TMP + (ksl * 3 + (t - 2)) * 8)
            if fi is not None:
                for i in range(4):
                    k(f"v_cvt_pk_bf16_f32 v{fr + i}, v{acc + 2 * i}, v{acc + 2 * i + 1}")
            if t == 2:
                for i in range(4):
                    k(f"v_cndmask_b32 v{fr + i}, v{fr + 4 + i}, v{fr + i}, s[58:59]")
            if t == 4:
                for i in range(4):
                    k(f"v_cndmask_b32 v{fr + i}, v{fr + 4 + i}, v{fr + i}, s[60:61]")
            for i in range(4):
                k(f"v_dot2c_f32_bf16 v{8 + t}, v{fr + i}, v7")
            if t < 5:
                k("s_mul_i32 s62, s41, 10240")
                k(f"s_add_u32 s62, s62, {(ksl * 5 + t) * 1024}")
            else:
                k("s_mul_i32 s62, s41, 4096")
                k(f"s_add_u32 s62, s62, {(90 + ksl * 2 + t - 5) * 1024}")
            k(f"buffer_store_dwordx4 v[{fr}:{fr + 3}], v5, s[28:31], s62 offen")
    k("s_branch prep_cs")

    k.label("prep_wb")
    k.fence()
    srd(k, 24, P_BW, 576 * 3456)
    srd(k, 28, P_WS, L.W_BYTES, L.OFF["WB"])
    srd(k, 32, P_WS, L.CSP_BYTES, L.OFF["CSPB"])
    k("v_lshrrev_b32 v16, 3, v1")
    k("v_mul_u32_u24 v16, 18, v16")
    k("v_bfe_u32 v17, v1, 2, 1")
    k("v_lshl_add_u32 v16, v17, 3, v16")
    k("v_and_b32 v17, 3, v1")
    k("v_add_u32 v16, v16, v17")
    k("v_lshl_add_u32 v16, v16, 1, v4")
    k("v_lshl_add_u32 v17, v1, 1, v4")
    k("v_lshrrev_b32 v18, 2, v1")
    k("v_mul_u32_u24 v18, 576, v18")
    k("v_bfe_u32 v19, v1, 1, 1")
    k("v_mul_u32_u24 v19, 18, v19")
    k("v_add_u32 v18, v18, v19")
    k("v_and_b32 v19, 1, v1")
    k("v_add3_u32 v18, v18, v19, 16")
    k("v_lshl_add_u32 v18, v18, 1, v4")
    k("s_mov_b32 s56, 110592")
    k("s_mul_i32 s62, s41, 14336")
    src = [(16, 0), (16, 8), (16, 1152), (16, 1160), (17, 2304), (17, 2340), (18, 0)]
    TMP = 32
    for ksl in range(2):
        if ksl == 1:
            for v in (16, 17, 18):
                k(f"v_add_u32 v{v}, s56, v{v}")
        for t in range(7):
            gather8(k, TMP + (ksl * 7 + t) * 8, src[t][0], 24, soffs, src[t][1])
        if ksl == 0:
            continue
    for ksl in range(2):
        for t in range(7):
            f = ksl * 7 + t
            remaining = (13 - f) * 8 + f
            k(f"s_waitcnt vmcnt({min(63, remaining)})")
            fr = 160 + 4 * (f & 3)
            combine8(k, fr, TMP + f * 8)
            for i in range(4):
                k(f"v_dot2c_f32_bf16 v{8 + t}, v{fr + i}, v7")
            k(f"buffer_store_dwordx4 v[{fr}:{fr + 3}], v5, s[28:31], s62 offen offset:{(f % 4) * 1024}")
            if f % 4 == 3:
                k("s_add_u32 s62, s62, 4096")
    k.vm = []
    k.label("prep_cs")
    k.fence()
    xreduce_multi(k, [("v_add_f32", 8 + t, 16 + t) for t in range(7)])
    k("s_mov_b64 exec, 0xffff")
    for t in range(7):
        k(f"buffer_store_dword v{8 + t}, v6, s[32:35], 0 offen offset:{64 * t}")
    k("s_endpgm")

    k.label("prep_wo")
    k.fence()
    k(f"s_sub_u32 s3, s2, {T_WO}")
    k("s_cmp_ge_u32 s3, 144")
    k("s_cselect_b32 s40, 1, 0")
    k("s_cselect_b32 s41, 144, 0")
    k("s_cselect_b32 s24, s16, s10")
    k("s_cselect_b32 s25, s17, s11")
    csel(k, 42, L.OFF['WOB'], L.OFF['WOA'])
    k("s_cselect_b32 s63, 4, 9")
    k(f"s_mov_b32 s26, {576 * 1152}")
    k("s_mov_b32 s27, 0x00020000")
    k("s_sub_u32 s3, s3, s41")
    k("s_mul_i32 s43, s3, 7282")
    k("s_lshr_b32 s43, s43, 16")
    k("s_mul_i32 s44, s43, 9")
    k("s_sub_u32 s44, s3, s44")
    srd(k, 28, P_WS, L.WO_BYTES, 0, soff=42)
    MA = [j for j in range(8)]
    MB = [0, 1, 2, 3, 8, 9, 10, 11]
    LA = [18 * (j // 2) + 9 * (j % 2) + 8 for j in range(8)]
    LB = [18 * (j // 2) + 16 + (j % 2) for j in range(8)]
    k("s_cmp_eq_u32 s40, 1")
    for j in range(8):
        csel(k, 48 + j, MB[j] * 1152, MA[j] * 1152)
        csel(k, 64 + j, LB[j] * 1152, LA[j] * 1152)
    k("s_cmp_eq_u32 s44, 8")
    for j in range(8):
        k(f"s_cselect_b32 s{48 + j}, s{64 + j}, s{48 + j}")
    k("s_cselect_b32 s56, 288, 36")
    k("s_cselect_b32 s57, 144, 18")
    k("s_cselect_b32 s63, 72, s63")
    k(f"s_cselect_b32 s58, {16 * 288}, 0")
    k("s_mul_i32 s59, s44, s56")
    k("s_lshl_b32 s59, s59, 1")
    k("s_sub_u32 s59, s59, s58")
    k("v_lshrrev_b32 v4, 1, v2")
    k("v_mul_lo_u32 v4, v4, s57")
    k("v_and_b32 v5, 1, v2")
    k("v_mul_lo_u32 v5, v5, s63")
    k("v_add3_u32 v4, v4, v5, s59")
    k("v_mul_u32_u24 v4, 1152, v4")
    k("s_mul_i32 s60, s43, 72")
    k("v_lshl_add_u32 v4, v1, 1, v4")
    k("v_add_u32 v4, s60, v4")
    k("s_mul_i32 s61, s56, 1152")
    k(f"s_mul_i32 s62, s43, {L.WO_CG_BYTES}")
    k("s_mul_i32 s45, s44, 6144")
    k("s_add_u32 s62, s62, s45")
    so = [f"s{48 + j}" for j in range(8)]
    TMP = 32
    for ksl in range(2):
        if ksl == 1:
            k("v_add_u32 v4, s61, v4")
        for t in range(3):
            gather8(k, TMP + (ksl * 3 + t) * 8, 4, 24, so, 32 * t)
    for f in range(6):
        remaining = (5 - f) * 8 + f
        k(f"s_waitcnt vmcnt({remaining})")
        fr = 96 + 4 * f
        combine8(k, fr, TMP + f * 8)
        if f == 4:
            k("s_add_u32 s62, s62, 4096")
        k(f"buffer_store_dwordx4 v[{fr}:{fr + 3}], v3, s[28:31], s62 offen offset:{(f % 4) * 1024}")
    k.vm = []
    k("s_endpgm")

    k.label("prep_x")
    k.fence()
    k(f"s_sub_u32 s3, s2, {T_X}")
    srd(k, 24, P_AX, 2048 * 1152)
    srd(k, 28, P_WS, L.XF_BYTES, L.OFF["XF0"])
    srd(k, 32, P_WS, L.ST_BYTES, L.OFF["ST0"])
    k("s_mul_i32 s40, s3, 18432")
    k("v_mul_u32_u24 v4, 1152, v1")
    k("v_lshl_add_u32 v4, v2, 4, v4")
    for ks in range(18):
        k(f"buffer_load_dwordx4 v[{32 + 4 * ks}:{35 + 4 * ks}], v4, s[24:27], s40 offen offset:{64 * ks}", tag=ks)
    k(f"v_mov_b32 v7, {ONES}")
    for i in range(8):
        k(f"v_mov_b32 v{8 + i}, 0")
    k("s_mov_b32 s41, s40")
    for ks in range(18):
        k(f"s_waitcnt vmcnt({17 - ks + ks})")
        for i in range(4):
            k(f"v_dot2c_f32_bf16 v8, v{32 + 4 * ks + i}, v7")
            k(f"v_dot2c_f32_bf16 v9, v{32 + 4 * ks + i}, v{32 + 4 * ks + i}")
        k(f"buffer_store_dwordx4 v[{32 + 4 * ks}:{35 + 4 * ks}], v3, s[28:31], s41 offen offset:{(ks % 4) * 1024}")
        if ks % 4 == 3:
            k("s_add_u32 s41, s41, 4096")
    k.vm = []
    xreduce_multi(k, [("v_add_f32", 8, 16), ("v_add_f32", 9, 17)])
    k("v_cmp_eq_u32 vcc, 0, v2")
    k("v_cndmask_b32 v8, 0, v8, vcc")
    k("v_cndmask_b32 v9, 0, v9, vcc")
    k("v_lshlrev_b32 v4, 7, v1")
    k("v_lshl_add_u32 v4, v2, 5, v4")
    k("s_lshl_b32 s42, s3, 11")
    k("buffer_store_dwordx4 v[8:11], v4, s[32:35], s42 offen")
    k("buffer_store_dwordx4 v[12:15], v4, s[32:35], s42 offen offset:16")
    k("s_endpgm")

    k.label("prep_z")
    k.fence()
    k(f"s_sub_u32 s3, s2, {T_Z}")
    srd(k, 24, P_WS, 2 * L.KVT_BYTES, L.OFF["KVT0"])
    k("s_lshl_b32 s40, s3, 12")
    for i in range(4):
        k(f"v_mov_b32 v{8 + i}, 0")
    for i in range(4):
        k(f"buffer_store_dwordx4 v[8:11], v3, s[24:27], s40 offen offset:{1024 * i}")
    k.label("prep_end")
    k("s_endpgm")
    return k
```

```python
from gen_common import *
import math

GS = L.OFF["XF1"] - L.OFF["XF0"]
GQ = L.OFF["QF1"] - L.OFF["QF0"]
LOG2E = math.log2(math.e)
LDS_CS = 131072
LDS_QKV = 131072 + 512
XR, WBUF, ACC = 128, 200, 96
OOB = 0x7fff0000


def f2u(x):
    import struct
    return struct.unpack("<I", struct.pack("<f", x))[0]


def tile_map(k, nwg=256):
    k("v_and_b32 v1, 63, v0")
    k("v_lshrrev_b32 v5, 6, v0")
    k("v_lshrrev_b32 v2, 4, v1")
    k("v_readfirstlane_b32 s40, v5")
    k("v_and_b32 v3, 15, v1")
    k("v_lshlrev_b32 v4, 4, v1")
    k("s_and_b32 s44, s2, 7")
    k("s_lshr_b32 s45, s2, 3")
    k("s_lshr_b32 s41, s44, 1")
    k("s_lshl_b32 s41, s41, 2")
    k("s_lshr_b32 s46, s45, 3")
    k("s_add_u32 s41, s41, s46")
    k("s_and_b32 s42, s44, 1")
    k("s_lshl_b32 s42, s42, 3")
    k("s_and_b32 s46, s45, 7")
    k("s_add_u32 s42, s42, s46")
    k("s_lshl_b32 s43, s41, 3")
    k("s_add_u32 s43, s43, s40")


def stats_from_partials(k, a, mb, rstd, t0, t1):
    k(f"v_add_f32 v{a}, v{a}, v{a + 2}")
    k(f"v_add_f32 v{a + 1}, v{a + 1}, v{a + 3}")
    k(f"v_add_f32 v{a + 4}, v{a + 4}, v{a + 6}")
    k(f"v_add_f32 v{a + 5}, v{a + 5}, v{a + 7}")
    k(f"v_add_f32 v{a}, v{a}, v{a + 4}")
    k(f"v_add_f32 v{a + 1}, v{a + 1}, v{a + 5}")
    xreduce_multi(k, [("v_add_f32", a, t0), ("v_add_f32", a + 1, t1)])
    inv = f2u(1.0 / 576)
    k(f"v_mul_f32 v{mb}, {inv:#x}, v{a}")
    k(f"v_mul_f32 v{rstd}, {inv:#x}, v{a + 1}")
    k(f"v_fma_f32 v{rstd}, -v{mb}, v{mb}, v{rstd}")
    k(f"v_max_f32 v{rstd}, 0, v{rstd}")
    round_bf16(k, mb)
    round_bf16(k, rstd)
    k(f"v_add_f32 v{rstd}, {f2u(1e-5):#x}, v{rstd}")
    round_bf16(k, rstd)
    k(f"v_sqrt_f32 v{rstd}, v{rstd}")
    round_bf16(k, rstd)
    k(f"v_rcp_f32 v{rstd}, v{rstd}")


def dual_softmax(k, src, c, E, out, t):
    mx, mn, t0, t1, sp, sn = t, t + 1, t + 2, t + 3, t + 4, t + 5
    k(f"v_max3_f32 v{mx}, v{src[0]}, v{src[1]}, v{src[2]}")
    k(f"v_min3_f32 v{mn}, v{src[0]}, v{src[1]}, v{src[2]}")
    for i in (3, 5, 7):
        k(f"v_max3_f32 v{mx}, v{mx}, v{src[i]}, v{src[i + 1]}")
        k(f"v_min3_f32 v{mn}, v{mn}, v{src[i]}, v{src[i + 1]}")
    k(f"v_mov_b32 v{t0}, v{mx}")
    k(f"v_mov_b32 v{t1}, v{mn}")
    k(f"v_permlane16_swap_b32 v{mx}, v{t0}")
    k(f"v_permlane16_swap_b32 v{mn}, v{t1}")
    k(f"v_max_f32 v{mx}, v{mx}, v{t0}")
    k(f"v_min_f32 v{mn}, v{mn}, v{t1}")
    k(f"v_mul_f32 v{mx}, v{c}, v{mx}")
    k(f"v_mul_f32 v{mn}, v{c}, v{mn}")
    for i in range(9):
        k(f"v_fma_f32 v{E + i}, v{src[i]}, v{c}, -v{mx}")
        k(f"v_fma_f32 v{E + 9 + i}, -v{src[i]}, v{c}, v{mn}")
    for i in range(18):
        k(f"v_exp_f32 v{E + i}, v{E + i}")
    k(f"v_add_f32 v{sp}, v{E}, v{E + 1}")
    k(f"v_add_f32 v{sn}, v{E + 9}, v{E + 10}")
    for i in range(2, 9):
        k(f"v_add_f32 v{sp}, v{sp}, v{E + i}")
        k(f"v_add_f32 v{sn}, v{sn}, v{E + 9 + i}")
    xreduce_multi(k, [("v_add_f32", sp, t0), ("v_add_f32", sn, t1)], steps=(16,))
    k(f"v_rcp_f32 v{sp}, v{sp}")
    k(f"v_rcp_f32 v{sn}, v{sn}")
    for i in range(9):
        k(f"v_mul_f32 v{E + i}, v{E + i}, v{sp}")
    for i in range(9):
        k(f"v_mul_f32 v{E + 9 + i}, v{E + 9 + i}, v{sn}")
    for i in range(9):
        k(f"v_cvt_pk_bf16_f32 v{out + i}, v{E + 2 * i}, v{E + 2 * i + 1}")


def gemm_pass(k, tiles, piece_fn, sync_rounds, mf, first_round_done, wait_x=True):
    nt = len(tiles)
    synced = first_round_done

    def need_round(ks):
        return max(piece_fn(ks, t) for t in tiles) // 8

    def ensure(ks):
        nonlocal synced
        nr = need_round(ks)
        if nr > synced:
            r = min(x for x in sync_rounds if x >= nr)
            k.wait_vm(("W", r))
            k("s_barrier")
            synced = r

    def rd(ks, i):
        b = WBUF + 28 * (ks & 1) + 4 * i
        off = piece_fn(ks, tiles[i]) * 1024
        base, o = (6, off) if off < 65536 else (7, off - 65536)
        k(f"ds_read_b128 v[{b}:{b + 3}], v{base} offset:{o}", tag=("w", ks, i))

    ensure(0)
    for i in range(nt):
        rd(0, i)
    for ks in range(18):
        if ks + 1 < 18:
            ensure(ks + 1)
        if wait_x:
            k.wait_vm(("x", ks))
        x = f"v[{XR + 4 * ks}:{XR + 4 * ks + 3}]"
        nxt = 0
        for n, (at, wi, sw) in enumerate(mf):
            k.wait_lg(("w", ks, wi))
            b = WBUF + 28 * (ks & 1) + 4 * wi
            w = f"v[{b}:{b + 3}]"
            a = f"v[{ACC + 4 * at}:{ACC + 4 * at + 3}]"
            if sw:
                k(f"v_mfma_f32_16x16x32_bf16 {a}, {x}, {w}, {a}")
            else:
                k(f"v_mfma_f32_16x16x32_bf16 {a}, {w}, {x}, {a}")
            if ks + 1 < 18 and nxt < nt:
                rd(ks + 1, nxt)
                nxt += 1
        while ks + 1 < 18 and nxt < nt:
            rd(ks + 1, nxt)
            nxt += 1
    return synced


def gen_qkv(typ):
    A = typ == "A"
    k = Kernel("qkv" + typ.lower() + "_body")
    end = k.name + "_end"
    load_args(k)
    k("s_cmp_ge_u32 s2, 256")
    k(f"s_cbranch_scc1 {end}")
    tile_map(k)
    k(f"s_mul_i32 s47, s3, {GS}")
    k("s_mul_i32 s48, s43, 18432")
    k("s_add_u32 s48, s48, s47")
    k("s_lshl_b32 s49, s42, 17")
    k("s_mul_i32 s50, s42, 4608")
    k("s_lshl_b32 s51, s43, 11")
    k("s_add_u32 s51, s51, s47")
    k("v_lshlrev_b32 v8, 7, v3")
    k("v_lshl_add_u32 v8, v2, 5, v8")
    k("s_lshl_b32 s52, s40, 6")
    k("v_lshlrev_b32 v9, 9, v2")
    k("v_lshl_add_u32 v9, v3, 2, v9")
    k("v_add_u32 v9, s52, v9")
    k("v_mov_b32 v6, v4")
    k("v_add_u32 v7, 0x10000, v4")
    k.wait_lg()
    srd(k, 24, P_WS, 18432, L.OFF["XF0"], soff=48)
    srd(k, 28, P_WS, L.W_HP_BYTES, L.OFF["W" + typ], soff=49)
    srd(k, 32, P_WS, 2048, L.OFF["ST0"], soff=51)
    srd(k, 36, P_WS, 4608, L.OFF["CSP" + typ], soff=50)
    k("buffer_load_dwordx4 v[16:19], v8, s[32:35], 0 offen", tag="st")
    k("buffer_load_dwordx4 v[20:23], v8, s[32:35], 0 offen offset:16", tag="st")
    k("buffer_load_dword v24, v9, s[36:39], 0 offen", tag="cs")
    k("buffer_load_dword v25, v9, s[36:39], 0 offen offset:2048", tag="cs")
    k("s_movk_i32 s53, 4096")
    k("buffer_load_dword v26, v9, s[36:39], s53 offen", tag="cs")
    tpk = 5 if A else 7
    k("s_lshl_b32 s54, s40, 10")
    xi = 0
    for r in range(16):
        k("s_mov_b32 m0, s54")
        k("buffer_load_dwordx4 v4, s[28:31], s54 offen lds", tag=("W", r))
        if r < 15:
            k("s_add_u32 s54, s54, 8192")
        upto = min(18, (8 * (r + 1)) // tpk + 1)
        while xi < upto:
            so = "0" if xi < 4 else f"s{56 + xi // 4}"
            if xi % 4 == 0 and xi >= 4:
                k(f"s_movk_i32 s{56 + xi // 4}, {4096 * (xi // 4)}")
            k(f"buffer_load_dwordx4 v[{XR + 4 * xi}:{XR + 4 * xi + 3}], v4, s[24:27], {so} offen offset:{1024 * (xi % 4)}",
              tag=("x", xi))
            xi += 1
    assert xi == 18
    MB, RS = 10, 11
    k.wait_vm("cs")
    k("v_add_f32 v24, v24, v25")
    k("v_add_f32 v24, v24, v26")
    stats_from_partials(k, 16, MB, RS, 12, 13)
    xreduce(k, "v_add_f32", 24, 25)
    k("v_lshlrev_b32 v25, 2, v3")
    k("v_add_u32 v25, s52, v25")
    k(f"v_add_u32 v25, {LDS_CS}, v25")
    k("ds_write_b32 v25, v24")
    if not A:
        k("v_lshlrev_b32 v26, 4, v2")
        for r in range(4):
            k(f"ds_bpermute_b32 v{28 + r}, v26, v{MB} offset:{4 * r}", tag="bp")
            k(f"ds_bpermute_b32 v{32 + r}, v26, v{RS} offset:{4 * r}", tag="bp")
    sync_rounds = [0, 1, 3, 5, 8, 11, 15] if A else [0, 2, 4, 7, 10, 13, 15]
    k.wait_vm(("W", sync_rounds[0]))
    k.wait_lg()
    k("s_barrier")
    k("v_lshlrev_b32 v26, 4, v2")
    k(f"v_add_u32 v26, {LDS_CS}, v26")
    k("v_lshlrev_b32 v27, 2, v3")
    k(f"v_add_u32 v27, {LDS_CS}, v27")
    ns_tiles = list(range(7)) if A else [0, 1, 2, 3, 6]
    for t in ns_tiles:
        k(f"ds_read_b128 v[{ACC + 4 * t}:{ACC + 4 * t + 3}], v26 offset:{64 * t}", tag=("ci", t))
    if not A:
        for i, t in enumerate((4, 5, 6)):
            k(f"ds_read_b32 v{36 + i}, v27 offset:{64 * t}", tag=("cj", t))
    for t in ns_tiles:
        k.wait_lg(("ci", t))
        for r in range(4):
            k(f"v_mul_f32 v{ACC + 4 * t + r}, -v{MB}, v{ACC + 4 * t + r}")
    if not A:
        k.wait_lg()
        for i, at in enumerate((4, 5, 7)):
            for r in range(4):
                k(f"v_mul_f32 v{ACC + 4 * at + r}, -v{28 + r}, v{36 + i}")

    if A:
        gen_a_rest(k, sync_rounds, MB, RS)
    else:
        gen_b_rest(k, sync_rounds, MB, RS)
    k.label(end)
    k("s_endpgm")
    return k


def gen_b_rest(k, sync_rounds, MB, RS):
    mf = [(0, 0, False), (1, 1, False), (2, 2, False), (3, 3, False), (4, 4, True), (5, 5, True), (6, 6, False),
          (7, 6, True)]
    k("s_lshr_b32 s60, s3, 1")
    k(f"s_mul_i32 s60, s60, {GQ}")
    srd(k, 64, P_WS, L.QF_BYTES, L.OFF["QF0"], soff=60)
    srd(k, 68, P_WS, L.QF_BYTES, L.OFF["KF0"], soff=60)
    srd(k, 72, P_WS, 2 * L.QL_BYTES, L.OFF["QL0"], soff=60)
    srd(k, 76, P_WS, L.VT_BYTES, L.OFF["VT0"], soff=60)
    assert L.OFF["KL0"] - L.OFF["QL0"] == L.QL_BYTES
    k("s_lshl_b32 s61, s42, 17")
    k("s_lshr_b32 s62, s43, 1")
    k("s_lshl_b32 s62, s62, 10")
    k("s_add_u32 s61, s61, s62")
    k("s_and_b32 s62, s43, 1")
    k("s_lshl_b32 s62, s62, 8")
    k("s_add_u32 s61, s61, s62")
    k("v_lshrrev_b32 v40, 1, v2")
    k("v_and_b32 v41, 1, v2")
    k("v_lshlrev_b32 v42, 16, v40")
    k("v_lshl_add_u32 v42, v41, 9, v42")
    k("v_lshl_add_u32 v42, v3, 4, v42")
    k("v_add_u32 v42, s61, v42")
    k("s_lshl_b32 s61, s42, 14")
    k("s_lshl_b32 s62, s43, 6")
    k("s_add_u32 s61, s61, s62")
    k("v_lshlrev_b32 v43, 18, v2")
    k("v_lshl_add_u32 v43, v3, 2, v43")
    k("v_add_u32 v43, s61, v43")
    k(f"s_mul_i32 s61, s42, {2 * L.VT_HEAD_BYTES}")
    k("s_mul_i32 s62, s43, 640")
    k("s_add_u32 s61, s61, s62")
    k("v_mul_u32_u24 v44, 320, v41")
    k("v_lshl_add_u32 v44, v40, 3, v44")
    k("v_add_u32 v44, s61, v44")
    k("v_lshl_add_u32 v45, v3, 4, v44")
    k("v_bfe_u32 v46, v3, 1, 1")
    k(f"v_mul_u32_u24 v46, {L.VT_HEAD_BYTES}, v46")
    k("v_add_u32 v46, v44, v46")
    k("v_and_b32 v47, 1, v3")
    k("v_bfe_u32 v48, v3, 2, 1")
    k("v_lshl_add_u32 v47, v48, 1, v47")
    k("v_lshl_add_u32 v46, v47, 4, v46")
    k("v_add_u32 v46, 256, v46")
    k(f"v_mov_b32 v47, {OOB:#x}")
    k("v_cmp_lt_u32 vcc, 7, v3")
    k("v_cndmask_b32 v46, v47, v46, vcc")
    k("v_cmp_lt_u32 s[62:63], 11, v3")
    cq = f2u((18 ** -0.5) * LOG2E)
    k(f"v_mul_f32 v47, {cq:#x}, v{RS}")
    k("v_cmp_eq_u32 vcc, 0, v2")
    k(f"v_cndmask_b32 v48, v{RS}, v47, vcc")
    k(f"s_mov_b32 s61, {L.VT_HEAD_BYTES}")
    k("s_movk_i32 s80, 8192")
    gemm_pass(k, list(range(7)), L.pieceB, sync_rounds, mf, sync_rounds[0])
    T = 50
    for (t0, sc, sd) in ((0, 47, 64), (2, RS, 68)):
        for i in range(8):
            k(f"v_mul_f32 v{ACC + 4 * t0 + i}, v{sc}, v{ACC + 4 * t0 + i}")
        for i in range(4):
            k(f"v_cvt_pk_bf16_f32 v{T + i}, v{ACC + 4 * t0 + 2 * i}, v{ACC + 4 * t0 + 2 * i + 1}")
        k(f"buffer_store_dwordx4 v[{T}:{T + 3}], v42, s[{sd}:{sd + 3}], 0 offen")
        T += 4
    for i, at in enumerate((4, 5, 7)):
        for r in range(4):
            k(f"v_mul_f32 v{ACC + 4 * at + r}, v{32 + r}, v{ACC + 4 * at + r}")
        k(f"v_cvt_pk_bf16_f32 v{T}, v{ACC + 4 * at}, v{ACC + 4 * at + 1}")
        k(f"v_cvt_pk_bf16_f32 v{T + 1}, v{ACC + 4 * at + 2}, v{ACC + 4 * at + 3}")
        if at == 4:
            k(f"buffer_store_dwordx2 v[{T}:{T + 1}], v45, s[76:79], 0 offen")
        elif at == 5:
            k(f"buffer_store_dwordx2 v[{T}:{T + 1}], v45, s[76:79], s61 offen")
        else:
            k(f"v_mov_b32 v{T + 2}, 0x3f803f80")
            k(f"v_cndmask_b32 v{T}, v{T}, v{T + 2}, s[62:63]")
            k(f"v_cndmask_b32 v{T + 1}, v{T + 1}, v{T + 2}, s[62:63]")
            k(f"buffer_store_dwordx2 v[{T}:{T + 1}], v46, s[76:79], 0 offen")
        T += 4
    for r in range(4):
        k(f"v_mul_f32 v{ACC + 24 + r}, v48, v{ACC + 24 + r}")
    k(f"v_cvt_pk_bf16_f32 v{T}, v{ACC + 24}, v{ACC + 25}")
    k(f"v_cvt_pk_bf16_f32 v{T + 1}, v{ACC + 26}, v{ACC + 27}")
    k(f"buffer_store_dword v{T}, v43, s[72:75], 0 offen")
    k(f"buffer_store_dword v{T + 1}, v43, s[72:75], s80 offen")


def gen_a_rest(k, sync_rounds, MB, RS):
    STG, AOP = 0, 49152
    C = 12
    k(f"v_mul_f32 v{C}, {f2u(LOG2E):#x}, v{RS}")
    k("s_lshr_b32 s60, s3, 1")
    k(f"s_mul_i32 s60, s60, {L.KVT_BYTES}")
    k(f"s_mul_i32 s61, s42, {2 * L.KVT_HEAD_BYTES}")
    k("s_add_u32 s60, s60, s61")
    srd(k, 64, P_WS, 2 * L.KVT_HEAD_BYTES, L.OFF["KVT0"], soff=60)
    srd(k, 68, P_WS, 18432, L.OFF["OF0"], soff=48)
    srd(k, 72, P_DBG, 256)
    k("v_lshrrev_b32 v40, 1, v2")
    k("v_and_b32 v41, 1, v2")
    k("s_mul_i32 s61, s40, 2560")
    k("v_mul_u32_u24 v42, 20480, v40")
    k("v_mul_u32_u24 v43, 160, v3")
    k("v_add3_u32 v42, v42, v43, s61")
    k("v_lshl_add_u32 v43, v41, 5, v42")
    k("v_mul_u32_u24 v44, 48, v41")
    k("v_add_u32 v42, v42, v44")
    mf1 = [(t, t, False) for t in range(5)]
    synced = gemm_pass(k, [0, 1, 2, 3, 4], L.pieceA, sync_rounds, mf1, sync_rounds[0])
    E, PK, T = 50, 70, 80
    dual_softmax(k, [ACC + i for i in range(9)], C, E, PK, T)
    for i in range(9):
        k(f"v_mul_f32 v{ACC + 9 + i}, v{RS}, v{ACC + 9 + i}")
    k("v_cmp_eq_u32 vcc, 0, v41")
    k(f"v_cndmask_b32 v{T}, 0, 1.0, vcc")
    VP = 88
    for i in range(4):
        k(f"v_cvt_pk_bf16_f32 v{VP + i}, v{ACC + 9 + 2 * i}, v{ACC + 10 + 2 * i}")
    k(f"v_cvt_pk_bf16_f32 v{VP + 4}, v{ACC + 17}, v{T}")
    k("s_barrier")
    k(f"ds_write_b128 v42, v[{PK}:{PK + 3}]")
    k(f"ds_write_b128 v42, v[{PK + 4}:{PK + 7}] offset:16")
    k(f"ds_write_b32 v42, v{PK + 8} offset:32")
    k(f"ds_write_b128 v43, v[{VP}:{VP + 3}] offset:96")
    k(f"ds_write_b32 v43, v{VP + 4} offset:112")
    k("s_cmp_ge_u32 s40, 3")
    k("s_cselect_b32 s62, 1, 0")
    k("s_cselect_b32 s63, 3, 0")
    k("s_sub_u32 s63, s40, s63")
    k("s_mul_i32 s76, s62, 20480")
    k("v_lshrrev_b32 v45, 2, v3")
    k("v_lshl_add_u32 v45, v2, 2, v45")
    k("v_mul_u32_u24 v45, 160, v45")
    k("v_and_b32 v46, 3, v3")
    k("v_lshl_add_u32 v45, v46, 3, v45")
    k("v_add_u32 v45, s76, v45")
    k("s_lshl_b32 s77, s63, 5")
    k("v_add_u32 v46, s77, v45")
    k("s_lshl_b32 s77, s63, 4")
    k("v_add_u32 v47, s77, v3")
    k("v_mul_u32_u24 v48, 768, v2")
    k("v_lshl_add_u32 v48, v47, 2, v48")
    k(f"s_mul_i32 s77, s62, {L.KVT_HEAD_BYTES}")
    k("v_add_u32 v48, s77, v48")
    k(f"v_mov_b32 v49, {OOB:#x}")
    k("v_subrev_u32 v50, 24, v47")
    k("v_min_u32 v50, v50, v47")
    k("v_cmp_gt_u32 vcc, 18, v50")
    k("v_cndmask_b32 v48, v49, v48, vcc")
    k("v_cmp_gt_u32 vcc, 3, v2")
    k("v_cndmask_b32 v47, v49, v48, vcc")
    k("v_cmp_gt_u32 vcc, 2, v2")
    k("v_cndmask_b32 v48, v49, v48, vcc")
    k.wait_lg()
    k.wait_vm(("W", 15))
    k("s_barrier")
    skip = k.newlabel("nokv")
    k("s_cmp_ge_u32 s40, 6")
    k(f"s_cbranch_scc1 {skip}")
    KB = 52
    TB = 200
    for kk in range(4):
        b = TB + 12 * kk
        for hf in range(2):
            o = 5120 * kk + 2560 * hf
            k(f"ds_read_b64_tr_b16 v[{b + 2 * hf}:{b + 2 * hf + 1}], v46 offset:{o}", tag=("kb", kk))
        for mt in range(2):
            for hf in range(2):
                o = 5120 * kk + 2560 * hf + 96 + 32 * mt
                k(f"ds_read_b64_tr_b16 v[{b + 4 + 4 * mt + 2 * hf}:{b + 5 + 4 * mt + 2 * hf}], v45 offset:{o}",
                  tag=("kb", kk))
    KA = 52
    for kk in range(4):
        b = TB + 12 * kk
        k.wait_lg(("kb", kk))
        for mt in range(2):
            cin = "0" if kk == 0 else f"v[{KA + 4 * mt}:{KA + 4 * mt + 3}]"
            k(f"v_mfma_f32_16x16x32_bf16 v[{KA + 4 * mt}:{KA + 4 * mt + 3}], v[{b + 4 + 4 * mt}:{b + 7 + 4 * mt}], v[{b}:{b + 3}], {cin}")
    for mt in range(2):
        for r in range(4):
            vo = 47 if (r <= 1 if mt == 0 else r == 0) else 48
            k(f"buffer_atomic_add_f32 v{KA + 4 * mt + r}, v{vo}, s[64:67], 0 offen offset:{(16 * mt + r) * 192}")
    k.label(skip)
    k.fence()
    k.vm = [None] * 8
    mf2 = [(5, 0, False), (6, 1, False)]
    gemm_pass(k, [5, 6], L.pieceA, sync_rounds, mf2, 15, wait_x=False)
    k.wait_vm()
    k("s_barrier")
    sig = k.newlabel("sig")
    k("s_cmp_lg_u32 s40, 7")
    k(f"s_cbranch_scc1 {sig}")
    k("s_lshl_b32 s61, s42, 4")
    k("v_mov_b32 v50, 1")
    k("v_mov_b32 v51, 0")
    k("s_mov_b64 exec, 1")
    k("buffer_atomic_add v50, v51, s[72:75], s61 offen sc1")
    k("s_mov_b64 exec, -1")
    k.label(sig)
    k.fence(8)
    k.vm = []
    PQ = 68
    dual_softmax(k, [ACC + 18 + i for i in range(9)], C, E, PQ, T)
    for z in range(9, 12):
        k(f"v_mov_b32 v{PQ + z}, 0")
    nob = k.newlabel("nobuild")
    k("s_cmp_ge_u32 s40, 3")
    k(f"s_cbranch_scc1 {nob}")
    k("s_lshl_b32 s61, s40, 2")
    k("v_and_b32 v50, 3, v3")
    k("v_add_u32 v50, s61, v50")
    k("v_bfe_u32 v51, v3, 2, 1")
    k("v_lshl_add_u32 v51, v51, 4, v50")
    k("v_cmp_gt_u32 vcc, 9, v50")
    k("v_cndmask_b32 v51, 9, v51, vcc")
    k("v_mul_u32_u24 v51, 192, v51")
    k(f"v_mul_u32_u24 v52, {L.KVT_HEAD_BYTES}, v40")
    k("v_mul_u32_u24 v53, 96, v41")
    k("v_add3_u32 v51, v51, v52, v53")
    k("v_lshrrev_b32 v52, 3, v3")
    k(f"v_mov_b32 v53, {OOB:#x}")
    k("v_cmp_eq_u32 vcc, v52, v40")
    k("v_cndmask_b32 v51, v53, v51, vcc")
    k("v_cmp_gt_u32 vcc, 10, v50")
    k("v_cndmask_b32 v51, v53, v51, vcc")
    k("s_lshl_b32 s61, s42, 4")
    k("v_mov_b32 v52, 0")
    k("s_mov_b32 s62, 0")
    poll = k.newlabel("poll")
    done = k.newlabel("polldone")
    k.label(poll)
    k("buffer_load_dword v53, v52, s[72:75], s61 offen sc1")
    k("s_add_u32 s62, s62, 1")
    k("s_waitcnt vmcnt(0)")
    k("v_readfirstlane_b32 s63, v53")
    k("s_cmp_ge_u32 s63, 16")
    k(f"s_cbranch_scc1 {done}")
    k("s_cmp_lt_u32 s62, 0x40000")
    k("s_sleep 1")
    k(f"s_cbranch_scc1 {poll}")
    k.label(done)
    k.fence(8)
    k.vm = []
    TB = 200
    for i in range(4):
        k(f"buffer_load_dwordx4 v[{TB + 4 * i}:{TB + 4 * i + 3}], v51, s[64:67], 0 offen offset:{16 * i} sc1")
    k(f"buffer_load_dwordx2 v[{TB + 16}:{TB + 17}], v51, s[64:67], 0 offen offset:64 sc1")
    k("s_mul_i32 s61, s40, 3072")
    k(f"s_add_u32 s61, s61, {AOP}")
    k("v_add_u32 v52, s61, v4")
    k.wait_vm()
    for i in range(9):
        k(f"v_cvt_pk_bf16_f32 v{TB + 20 + i}, v{TB + 2 * i}, v{TB + 2 * i + 1}")
    k(f"ds_write_b128 v52, v[{TB + 20}:{TB + 23}]")
    k(f"ds_write_b128 v52, v[{TB + 24}:{TB + 27}] offset:1024")
    k(f"ds_write_b32 v52, v{TB + 28} offset:2048")
    k.wait_lg()
    k.label(nob)
    k.fence(8)
    k("s_barrier")
    AO = 128
    for mt in range(3):
        b = AO + 12 * mt
        k(f"ds_read_b128 v[{b}:{b + 3}], v4 offset:{AOP + 3072 * mt}", tag=("ao", mt))
        k(f"ds_read_b128 v[{b + 4}:{b + 7}], v4 offset:{AOP + 3072 * mt + 1024}", tag=("ao", mt))
        k(f"ds_read_b32 v{b + 8}, v4 offset:{AOP + 3072 * mt + 2048}", tag=("ao", mt))
        for z in range(9, 12):
            k(f"v_mov_b32 v{b + z}, 0")
    k("s_lshl_b32 s61, s42, 10")
    k("s_lshr_b32 s62, s42, 3")
    k("s_add_u32 s62, s62, 16")
    k("s_lshl_b32 s62, s62, 10")
    k("s_bfe_u32 s63, s42, 0x20001")
    k("s_lshl_b32 s63, s63, 8")
    k("s_add_u32 s62, s62, s63")
    k("s_and_b32 s63, s42, 1")
    k("s_lshl_b32 s63, s63, 3")
    k("s_add_u32 s62, s62, s63")
    k("v_lshlrev_b32 v50, 4, v3")
    k("v_lshl_add_u32 v50, v2, 1, v50")
    OA = 176
    for mt in (2, 0, 1):
        b = AO + 12 * mt
        k.wait_lg(("ao", mt))
        for u in range(3):
            cin = "0" if u == 0 else f"v[{OA + 4 * mt}:{OA + 4 * mt + 3}]"
            k(f"v_mfma_f32_16x16x32_bf16 v[{OA + 4 * mt}:{OA + 4 * mt + 3}], v[{b + 4 * u}:{b + 4 * u + 3}], v[{PQ + 4 * u}:{PQ + 4 * u + 3}], {cin}")
    k(f"v_add_f32 v51, {f2u(1e-6):#x}, v{OA + 9}")
    k("v_rcp_f32 v51, v51")
    for i in range(9):
        k(f"v_mul_f32 v{OA + i}, v51, v{OA + i}")
    for i in range(4):
        k(f"v_cvt_pk_bf16_f32 v{52 + i}, v{OA + 2 * i}, v{OA + 2 * i + 1}")
    k(f"v_cvt_pk_bf16_f32 v56, v{OA + 8}, v{OA + 8}")
    k("buffer_store_dwordx4 v[52:55], v4, s[68:71], s61 offen")
    k("buffer_store_short v56, v50, s[68:71], s62 offen")
```

```python
import numpy as np

S, D, H, DH = 2048, 576, 32, 18
NPT = 128
NKS = 18

XF_BYTES = NPT * NKS * 1024
ST_BYTES = S * 16 * 8
W_HP_BYTES = 128 * 1024
W_BYTES = 16 * W_HP_BYTES
WO_CG_BYTES = 56 * 1024
WO_BYTES = 16 * WO_CG_BYTES
CSP_BYTES = 16 * 9 * 128 * 4
KVT_HEAD_BYTES = 32 * 48 * 4
KVT_BYTES = 32 * KVT_HEAD_BYTES
QF_BYTES = 32 * 64 * 1024
QL_BYTES = 32 * 2048 * 4
VT_GRP = 640
VT_HEAD_BYTES = 128 * VT_GRP
VT_BYTES = 32 * VT_HEAD_BYTES

_off = 0
OFF = {}


def _alloc(name, n):
    global _off
    OFF[name] = _off
    _off += (n + 4095) // 4096 * 4096


for t in "AB":
    _alloc("W" + t, W_BYTES)
    _alloc("WO" + t, WO_BYTES)
    _alloc("CSP" + t, CSP_BYTES)
for l in range(2):
    _alloc(f"KVT{l}", KVT_BYTES)
for l in range(4):
    _alloc(f"XF{l}", XF_BYTES)
    _alloc(f"ST{l}", ST_BYTES)
    _alloc(f"OF{l}", XF_BYTES)
for l in range(2):
    _alloc(f"QF{l}", QF_BYTES)
    _alloc(f"KF{l}", QF_BYTES)
    _alloc(f"QL{l}", QL_BYTES)
    _alloc(f"KL{l}", QL_BYTES)
    _alloc(f"VT{l}", VT_BYTES)
_alloc("FLAGS", 65536)
WS_USED = _off


def slotA(t, m):
    g, r = m >> 2, m & 3
    q = 4 * t + r
    hl, half = g >> 1, g & 1
    if q <= 8:
        return ("pk", hl, 9 * half + q)
    if q <= 17:
        return ("v", hl, 9 * half + q - 9)
    if q <= 26:
        return ("pq", hl, 9 * half + q - 18)
    return (None, 0, 0)


def slotB(t, m):
    g, r = m >> 2, m & 3
    if t < 2:
        return ("q", g >> 1, 8 * (g & 1) + 4 * t + r)
    if t < 4:
        return ("k", g >> 1, 8 * (g & 1) + 4 * (t - 2) + r)
    if t == 4:
        return ("v", 0, m)
    if t == 5:
        return ("v", 1, m)
    if m < 12:
        return ("qkv"[m >> 2], (m >> 1) & 1, 16 + (m & 1))
    return (None, 0, 0)


def permA():
    p = np.zeros(576, np.int64)
    for kap in range(576):
        if kap < 512:
            c, j = kap // 8, kap % 8
            p[kap] = 18 * (c // 2) + 9 * (c % 2) + j
        else:
            i = kap - 512
            p[kap] = 18 * (i // 2) + 9 * (i % 2) + 8
    return p


def permB():
    p = np.zeros(576, np.int64)
    for kap in range(576):
        if kap < 512:
            c, j = kap // 8, kap % 8
            h = c % 2
            d = 4 * h + j if j < 4 else 8 + 4 * h + (j - 4)
            p[kap] = 18 * (c // 2) + d
        else:
            i = kap - 512
            p[kap] = 18 * (i // 2) + 16 + (i % 2)
    return p


def pieceA(ks, t):
    return ks * 5 + t if t < 5 else 90 + ks * 2 + (t - 5)


def pieceB(ks, t):
    return ks * 7 + t


def frag_major(x):
    a = x.reshape(NPT, 16, NKS, 4, 8)
    return a.transpose(0, 2, 3, 1, 4).reshape(NPT, NKS, 64, 8)


def unfrag(f):
    a = f.reshape(NPT, NKS, 4, 16, 8)
    return a.transpose(0, 3, 1, 2, 4).reshape(S, D)


def pack_w(cols_fn, Wm_by_kind, piece_fn, hp):
    out = np.zeros((126, 64, 8), np.float32)
    valid = np.zeros((126, 64), bool)
    for t in range(7):
        for m in range(16):
            kind, hl, idx = cols_fn(t, m)
            if kind is None:
                continue
            col = Wm_by_kind[kind][:, 18 * (2 * hp + hl) + idx]
            c = col.reshape(NKS, 4, 8)
            for ks in range(NKS):
                p = piece_fn(ks, t)
                for g in range(4):
                    out[p, g * 16 + m] = c[ks, g]
                    valid[p, g * 16 + m] = True
    return out, valid


def pack_wo(wo, perm, cg):
    out = np.zeros((54, 64, 8), np.float32)
    valid = np.zeros((54, 64), bool)
    wp = wo[perm]
    for t in range(3):
        for m in range(16):
            gq, r = m >> 2, m & 3
            if 4 * t + gq >= 9:
                continue
            n = 36 * cg + 4 * (4 * t + gq) + r
            c = wp[:, n].reshape(NKS, 4, 8)
            for ks in range(NKS):
                for g in range(4):
                    out[ks * 3 + t, g * 16 + m] = c[ks, g]
                    valid[ks * 3 + t, g * 16 + m] = True
    return out, valid
```

```python
import sys
sys.path.insert(0, "dev")
from asmdsl import *
import layout as L
from gen_p import gen_p, N_TASKS
from gen_qkv import gen_qkv, LDS_QKV
from gen_out import gen_out, LDS_OUT
from gen_att import gen_att, LDS_ATT

HDR = open("interleave_layers__linear_kernel_hedgehog__sliding_block__prompt.s.ref").read()
HDR = "\n".join(l for l in HDR.splitlines() if l.startswith(";") and "@launch" not in l and "Override" not in l and "grid=ceil" not in l)


def desc(name, k):
    nv = k.maxv + 1
    acc_off = max(4, (nv + 3) // 4 * 4)
    ns = max(k.maxs + 1, 8)
    return f""".p2align 6
.amdhsa_kernel {name}
  .amdhsa_next_free_vgpr {nv}
  .amdhsa_next_free_sgpr {ns}
  .amdhsa_accum_offset {acc_off}
  .amdhsa_group_segment_fixed_size 0
  .amdhsa_kernarg_size 80
  .amdhsa_user_sgpr_count 2
  .amdhsa_user_sgpr_kernarg_segment_ptr 1
  .amdhsa_system_sgpr_workgroup_id_x 1
  .amdhsa_float_denorm_mode_32 3
.end_amdhsa_kernel
"""


def build(nlaunch=None):
    P = gen_p()
    QA, QB, O, AT = gen_qkv("A"), gen_qkv("B"), gen_out(), gen_att()
    launches = [("prep_kernel", N_TASKS, 64, 0)]
    stubs = []
    for l in range(4):
        if l % 2 == 0:
            stubs.append((f"qkva{l}_kernel", l, QA))
            launches.append((f"qkva{l}_kernel", 256, 512, LDS_QKV))
        else:
            stubs.append((f"qkvb{l}_kernel", l, QB))
            launches.append((f"qkvb{l}_kernel", 256, 512, LDS_QKV))
            stubs.append((f"att{l}_kernel", l, AT))
            launches.append((f"att{l}_kernel", 512, 256, LDS_ATT))
        stubs.append((f"out{l}_kernel", l, O))
        launches.append((f"out{l}_kernel", 256, 512, LDS_OUT))
    if nlaunch:
        launches = launches[:nlaunch]
    s = HDR + "\n"
    for (n, g, b, lds) in launches:
        s += f"; @launch kernel={n} grid=({g},1,1) block=({b},1,1) lds={lds}\n"
    s += '.amdgcn_target "amdgcn-amd-amdhsa--gfx950"\n.text\n'
    s += f".globl prep_kernel\n.p2align 8\n.type prep_kernel,@function\nprep_kernel:\n{P.text()}\n"
    for (n, l, body) in stubs:
        s += f".globl {n}\n.p2align 8\n.type {n},@function\n{n}:\n    s_mov_b32 s3, {l}\n    s_branch {body.name}\n"
    for body in (QA, O, QB, AT):
        s += f".p2align 8\n{body.name}:\n{body.text()}\n"
    s += '.section .rodata,"a"\n'
    s += desc("prep_kernel", P)
    for (n, l, body) in stubs:
        s += desc(n, body)
    info = {k.name: (k.ninstr(), k.maxv + 1, k.maxs + 1) for k in (P, QA, QB, O, AT)}
    return s, info


if __name__ == "__main__":
    out = sys.argv[1] if len(sys.argv) > 1 else "interleave_layers__linear_kernel_hedgehog__sliding_block__prompt.s"
    s, info = build()
    open(out, "w").write(s)
    print(info, "ws used MB", L.WS_USED / 2**20)
```
